```python
import torch

def _softmax(x, axis=-1):
    return torch.softmax(x, dim=axis)
def _gelu(x):
    return torch.nn.functional.gelu(x, approximate="tanh")
def _silu(x):
    return torch.nn.functional.silu(x)
def _sigmoid(x):
    return torch.sigmoid(x)
def _layernorm(x, axis=-1, eps=1e-5):
    m = x.mean(dim=axis, keepdim=True)
    v = x.var(dim=axis, keepdim=True, unbiased=False)
    return (x - m) / torch.sqrt(v + eps)
def _scatter_add(tgt, idx, src, axis=0):
    return tgt.clone().index_add_(axis, idx, src)
def _segment_sum(src, seg, n):
    out = torch.zeros((n,) + src.shape[1:], dtype=src.dtype)
    return out.index_add_(0, seg, src)
def _pad(x, pw):
    flat = tuple(v for pair in reversed(pw) for v in pair)
    return torch.nn.functional.pad(x, flat)

kernel_name = 'interleave_layers__linear_attn_block__dense_activation_silu__prompt'

def setup_inputs():

    _w = (lambda a: (lambda t: t.to(torch.bfloat16) if t.is_floating_point() else t)(torch.as_tensor(a)))
    def _A_setup():
        B, S, D = 1, 2048, 512
        return {
            "x": _w((lambda *s: torch.randn(*s, dtype=torch.bfloat16) * 0.05)(B, S, D)),
            "wqkv": _w((lambda *s: torch.randn(*s, dtype=torch.bfloat16) * 0.05)(D, 3 * D)),
            "wo": _w((lambda *s: torch.randn(*s, dtype=torch.bfloat16) * 0.05)(D, D)),
        }
    _A_in = _A_setup()

    def _B_setup():
        B, S, D, F = 1, 2048, 512, 1792
        return {
            "x": _w((lambda *s: torch.randn(*s, dtype=torch.bfloat16) * 0.05)(B, S, D)),
            "w1": _w((lambda *s: torch.randn(*s, dtype=torch.bfloat16) * 0.8)(D, F) * (D ** -0.5)),
            "w2": _w((lambda *s: torch.randn(*s, dtype=torch.bfloat16) * 0.8)(F, D) * (F ** -0.5)),
        }
    _B_in = _B_setup()

    return {
        "A_x": _A_in["x"],
        "A_wqkv": _A_in["wqkv"],
        "A_wo": _A_in["wo"],
        "B_x": _B_in["x"],
        "B_w1": _B_in["w1"],
        "B_w2": _B_in["w2"],
    }

def reference(A_x, A_wqkv, A_wo, B_x, B_w1, B_w2):
    def _A_ref(x, wqkv, wo):
        B, S, D = x.shape
        H = 32; Dh = D // H
        qkv = (lambda x, *d: x.permute(*d))((x @ wqkv).reshape(B, S, 3, H, Dh), 2, 0, 3, 1, 4)
        q, k, v = qkv[0], qkv[1], qkv[2]
        phi = lambda t: torch.where(t > 0, t + 1, torch.exp(t)) + 1e-6
        pq, pk = phi(q), phi(k)
        kv = torch.einsum("bhsd,bhse->bhde", pk, v)
        z = torch.einsum("bhsd->bhd", pk)
        num = torch.einsum("bhqd,bhde->bhqe", pq, kv)
        den = torch.einsum("bhqd,bhd->bhq", pq, z)[..., None] + 1e-6
        o = num / den
        return (lambda x, *d: x.permute(*d))(o, 0, 2, 1, 3).reshape(B, S, D) @ wo

    def _B_ref(x, w1, w2):
        h = torch.einsum("bsd,df->bsf", x, w1)
        h = _silu(h)
        out = torch.einsum("bsf,fd->bsd", h, w2)
        return out

    x = A_x
    x = x + _A_ref(_layernorm(x, axis=-1), A_wqkv, A_wo)
    x = x + _B_ref(_layernorm(x, axis=-1), B_w1, B_w2)
    x = x + _A_ref(_layernorm(x, axis=-1), A_wqkv, A_wo)
    x = x + _B_ref(_layernorm(x, axis=-1), B_w1, B_w2)
    return x
```

```python
class R:
    def __init__(self, kind, idx, n=1):
        self.kind, self.idx, self.n = kind, idx, n

    def __str__(self):
        if self.n == 1:
            return f"{self.kind}{self.idx}"
        return f"{self.kind}[{self.idx}:{self.idx + self.n - 1}]"

    def __getitem__(self, i):
        if isinstance(i, slice):
            start = i.start or 0
            stop = i.stop if i.stop is not None else self.n
            assert 0 <= start < stop <= self.n
            return R(self.kind, self.idx + start, stop - start)
        assert 0 <= i < self.n
        return R(self.kind, self.idx + i, 1)

    def regs(self):
        return {(self.kind, self.idx + i) for i in range(self.n)}


def v(i, n=1):
    return R("v", i, n)


def a(i, n=1):
    return R("a", i, n)


def s(i, n=1):
    return R("s", i, n)


VCC = R("s", 106, 2)
VCC.__class__ = type("VCCR", (R,), {"__str__": lambda self: "vcc"})
M0 = R("s", 124, 1)
M0.__class__ = type("M0R", (R,), {"__str__": lambda self: "m0"})
EXEC = R("s", 126, 2)
EXEC.__class__ = type("EXECR", (R,), {"__str__": lambda self: "exec"})

TRANS = ("v_exp_f32", "v_log_f32", "v_rcp_f32", "v_rsq_f32", "v_sqrt_f32", "v_sin_f32", "v_cos_f32")


def regs_of(x):
    if isinstance(x, R):
        return x.regs()
    return set()


class Ins:
    __slots__ = ("text", "cls", "w", "r", "pos", "passes", "srcc", "data", "ab")

    def __init__(self, text, cls, w=(), r=(), passes=0, srcc=(), data=(), ab=()):
        self.text, self.cls = text, cls
        self.w, self.r = set(w), set(r)
        self.passes = passes
        self.srcc = set(srcc)
        self.data = set(data)
        self.ab = set(ab)
        self.pos = 0


class Alloc:
    def __init__(self, kind, start, limit):
        self.kind, self.next, self.limit = kind, start, limit
        self.high = start

    def get(self, n=1, align=None):
        if align is None:
            align = 1 if n == 1 else (2 if n == 2 else 4)
        i = (self.next + align - 1) // align * align
        assert i + n <= self.limit, f"out of {self.kind} registers ({i}+{n} > {self.limit})"
        self.next = i + n
        self.high = max(self.high, self.next)
        return R(self.kind, i, n)


class Kern:
    def __init__(self, name):
        self.name = name
        self.lines = []
        self.hist = []
        self.pos = 0
        self.vmq = []
        self.vm_next = 0
        self.lgq = []
        self.lg_next = 0
        self.V = Alloc("v", 1, 256)
        self.A = Alloc("a", 0, 256)
        self.S = Alloc("s", 4, 100)
        self.nlab = 0
        self.stats = {}

    def raw(self, text):
        self.lines.append(text)

    def comment(self, t):
        self.lines.append("    ; " + t)

    def _need(self, ins):
        need = self.pos
        isvalu = ins.cls in ("valu", "trans", "readlane", "dpp", "permlane")
        ismfma = ins.cls == "mfma"
        isvmem = ins.cls in ("vload", "vstore", "vatomic", "ldsdma")
        isds = ins.cls in ("dsread", "dswrite")
        for p in self.hist:
            d = 0
            pvalu = p.cls in ("valu", "trans", "readlane", "dpp", "permlane")
            if pvalu:
                pv = {x for x in p.w if x[0] in "va"}
                ps = {x for x in p.w if x[0] == "s"}
                if ismfma and pv & ins.r:
                    d = max(d, 2)
                if p.cls == "trans" and isvalu and ins.cls != "trans" and pv & ins.r:
                    d = max(d, 1)
                if p.cls == "trans" and (isvmem or isds) and pv & ins.r:
                    d = max(d, 1)
                if ins.cls == "readlane" and pv & ins.r:
                    d = max(d, 1)
                if ins.cls in ("dpp", "permlane") and pv & ins.r:
                    d = max(d, 2)
                if ps:
                    if isvalu and ps & ins.r:
                        d = max(d, 4 if ins.cls == "readlane" else 2)
                    if isvmem and ps & ins.r:
                        d = max(d, 5)
                    if ins.cls in ("salu", "branch") and ps & ins.r:
                        d = max(d, 2)
                    if EXEC.regs() & ps:
                        if ismfma:
                            d = max(d, 4)
                        if ins.cls in ("dpp",):
                            d = max(d, 5)
                        if ins.cls in ("readlane", "permlane"):
                            d = max(d, 4)
            if p.cls == "mfma":
                n = p.passes
                big = {2: 5, 4: 8, 8: 12, 16: 20}[n]
                ovl = {2: 4, 4: 6, 8: 10, 16: 18}[n]
                war = {2: 1, 4: 3, 8: 7, 16: 15}[n]
                if ismfma:
                    if p.w & ins.ab:
                        d = max(d, big)
                    if p.w & ins.srcc:
                        if p.w == ins.srcc and p.passes == ins.passes:
                            d = max(d, 2 if n == 2 else 0)
                        else:
                            d = max(d, ovl)
                    elif p.w & ins.w:
                        d = max(d, big)
                else:
                    if p.w & (ins.r | ins.w):
                        d = max(d, big)
                    if isvalu and p.srcc & ins.w:
                        d = max(d, war)
            if p.cls == "salu" and M0.regs() & p.w and ins.cls == "ldsdma":
                d = max(d, 1)
            if p.cls in ("vstore", "vatomic") and len(p.data) >= 3 and p.data & ins.w:
                d = max(d, 2)
            if d:
                need = max(need, p.pos + 1 + d)
        return need

    def _emit(self, ins):
        need = self._need(ins)
        while self.pos < need:
            n = min(need - self.pos, 16)
            self.lines.append(f"    s_nop {n - 1}")
            self.pos += n
            self.stats["nop"] = self.stats.get("nop", 0) + n
        ins.pos = self.pos
        self.pos += 1
        self.lines.append("    " + ins.text)
        self.hist.append(ins)
        if len(self.hist) > 40:
            self.hist.pop(0)
        self.stats[ins.cls] = self.stats.get(ins.cls, 0) + 1

    def fence(self, n=20):
        if self.hist:
            last = max(p.pos for p in self.hist if True)
            need = last + 1 + n
            while self.pos < need:
                k = min(need - self.pos, 16)
                self.lines.append(f"    s_nop {k - 1}")
                self.pos += k
        self.hist = []

    def label(self, name=None):
        if name is None:
            name = f"L{self.name}_{self.nlab}"
            self.nlab += 1
        return name

    def place(self, name):
        self.lines.append(f"{name}:")

    def salu(self, op, d, *src, wscc=True):
        txt = f"{op} " + ", ".join(str(x) for x in ((d,) if d is not None else ()) + src)
        r = set()
        for x in src:
            r |= regs_of(x)
        self._emit(Ins(txt, "salu", regs_of(d), r))

    def scmp(self, op, x, y):
        self._emit(Ins(f"{op} {x}, {y}", "salu", (), regs_of(x) | regs_of(y)))

    def branch(self, op, lab):
        self._emit(Ins(f"{op} {lab}", "branch"))

    def smem(self, op, d, base, off):
        self._emit(Ins(f"{op} {d}, {base}, {off}", "smem", regs_of(d), regs_of(base)))

    def nop(self, n=0):
        self.lines.append(f"    s_nop {n}")
        self.pos += n + 1

    def barrier(self):
        self._emit(Ins("s_barrier", "barrier"))

    def endpgm(self):
        self._emit(Ins("s_endpgm", "branch"))

    def sraw(self, txt):
        self._emit(Ins(txt, "salu"))

    def valu(self, op, d, *src, mods="", extra_r=(), extra_w=()):
        cls = "trans" if op in TRANS else "valu"
        if op in ("v_readfirstlane_b32", "v_readlane_b32"):
            cls = "readlane"
        if op.startswith("v_permlane"):
            cls = "permlane"
        if "row_" in mods or "quad_perm" in mods:
            cls = "dpp"
        ops = []
        r = set()
        for x in src:
            if isinstance(x, tuple):
                ops.append(f"{x[0]}{x[1]}")
                r |= regs_of(x[1])
            else:
                ops.append(str(x))
                r |= regs_of(x)
        w = regs_of(d)
        if op.startswith("v_fmac") or op.startswith("v_pk_fmac") or cls == "permlane":
            r |= w
        if cls == "permlane":
            w |= regs_of(src[0])
        for x in extra_r:
            r |= regs_of(x)
        for x in extra_w:
            w |= regs_of(x)
        if cls == "dpp":
            r |= w
        txt = f"{op} {d}, " + ", ".join(ops) + (" " + mods if mods else "")
        self._emit(Ins(txt, cls, w, r))

    def vcmp(self, op, d, x, y):
        self.valu(op, d, x, y)

    def cndmask(self, d, f, t, m=VCC):
        self.valu("v_cndmask_b32", d, f, t, m)

    def mfma(self, d, x, y, c, shape="16x16x32"):
        passes = {"16x16x32": 4, "16x16x16": 4, "32x32x16": 8}[shape]
        txt = f"v_mfma_f32_{shape}_bf16 {d}, {x}, {y}, {c}"
        self._emit(
            Ins(txt, "mfma", regs_of(d), regs_of(x) | regs_of(y) | regs_of(c), passes=passes,
                srcc=regs_of(c), ab=regs_of(x) | regs_of(y))
        )

    def _vm(self):
        i = self.vm_next
        self.vm_next += 1
        self.vmq.append(i)
        return i

    def bload(self, d, voff, srd, soff=0, off=0, flags=""):
        w = {1: "dword", 2: "dwordx2", 3: "dwordx3", 4: "dwordx4"}[d.n]
        assert 0 <= off < 4096
        txt = f"buffer_load_{w} {d}, {voff}, {srd}, {soff} offen" + (f" offset:{off}" if off else "") + (" " + flags if flags else "")
        self._emit(Ins(txt, "vload", regs_of(d), regs_of(voff) | regs_of(srd) | regs_of(soff)))
        return self._vm()

    def bload_lds(self, voff, srd, soff=0, off=0, flags=""):
        txt = f"buffer_load_dwordx4 {voff}, {srd}, {soff} offen" + (f" offset:{off}" if off else "") + " lds" + (" " + flags if flags else "")
        self._emit(Ins(txt, "ldsdma", (), regs_of(voff) | regs_of(srd) | regs_of(soff) | M0.regs()))
        return self._vm()

    def bstore(self, d, voff, srd, soff=0, off=0, flags=""):
        w = {1: "dword", 2: "dwordx2", 3: "dwordx3", 4: "dwordx4"}[d.n]
        assert 0 <= off < 4096
        txt = f"buffer_store_{w} {d}, {voff}, {srd}, {soff} offen" + (f" offset:{off}" if off else "") + (" " + flags if flags else "")
        self._emit(Ins(txt, "vstore", (), regs_of(d) | regs_of(voff) | regs_of(srd) | regs_of(soff), data=regs_of(d)))
        return self._vm()

    def batomic(self, op, d, voff, srd, soff=0, off=0, flags=""):
        txt = f"{op} {d}, {voff}, {srd}, {soff} offen" + (f" offset:{off}" if off else "") + (" " + flags if flags else "")
        w = regs_of(d) if "sc0" in flags else ()
        self._emit(Ins(txt, "vatomic", w, regs_of(d) | regs_of(voff) | regs_of(srd) | regs_of(soff), data=regs_of(d)))
        return self._vm()

    def wait_vm(self, i=None):
        if not self.vmq:
            return
        if i is None:
            n = 0
        else:
            if i not in self.vmq:
                return
            n = len(self.vmq) - 1 - self.vmq.index(i)
        n = min(n, 63)
        self._emit(Ins(f"s_waitcnt vmcnt({n})", "wait"))
        self.vmq = self.vmq[len(self.vmq) - n:] if n else []

    def _lg(self):
        i = self.lg_next
        self.lg_next += 1
        self.lgq.append(i)
        return i

    def dsread(self, d, addr, off=0, tr=False):
        assert 0 <= off < 65536
        if tr:
            op = "ds_read_b64_tr_b16"
            assert d.n == 2
        else:
            op = {1: "ds_read_b32", 2: "ds_read_b64", 4: "ds_read_b128"}[d.n]
        txt = f"{op} {d}, {addr}" + (f" offset:{off}" if off else "")
        self._emit(Ins(txt, "dsread", regs_of(d), regs_of(addr)))
        return self._lg()

    def dswrite(self, addr, d, off=0):
        assert 0 <= off < 65536
        op = {1: "ds_write_b32", 2: "ds_write_b64", 4: "ds_write_b128"}[d.n]
        txt = f"{op} {addr}, {d}" + (f" offset:{off}" if off else "")
        self._emit(Ins(txt, "dswrite", (), regs_of(addr) | regs_of(d)))
        return self._lg()

    def bpermute(self, d, addr, src):
        self._emit(Ins(f"ds_bpermute_b32 {d}, {addr}, {src}", "dsread", regs_of(d), regs_of(addr) | regs_of(src)))
        return self._lg()

    def wait_lg(self, i=None, force=False):
        if not self.lgq and not force:
            return
        if i is None:
            n = 0
        else:
            if i not in self.lgq:
                return
            n = len(self.lgq) - 1 - self.lgq.index(i)
        n = min(n, 15)
        self._emit(Ins(f"s_waitcnt lgkmcnt({n})", "wait"))
        self.lgq = self.lgq[len(self.lgq) - n:] if n else []

    def text(self):
        out = [f".globl {self.name}", ".p2align 8", f".type {self.name},@function", f"{self.name}:"]
        out += self.lines
        return "\n".join(out) + "\n"

    def descriptor(self):
        nv = max(self.V.high, 8)
        acc = (nv + 3) // 4 * 4
        na = self.A.high
        nfv = acc + na if na else nv
        return f""".amdhsa_kernel {self.name}
  .amdhsa_next_free_vgpr {nfv}
  .amdhsa_next_free_sgpr 102
  .amdhsa_accum_offset {acc}
  .amdhsa_group_segment_fixed_size 0
  .amdhsa_kernarg_size 72
  .amdhsa_user_sgpr_count 2
  .amdhsa_user_sgpr_kernarg_segment_ptr 1
  .amdhsa_system_sgpr_workgroup_id_x 1
.end_amdhsa_kernel
"""
```

```python
import sys
from asmgen import *

MB = 1 << 20
WS_PQ = 0
WS_X1 = 2 * MB
WS_X2 = 4 * MB
WS_X3 = 6 * MB
WS_H = 8 * MB
WS_W2T = 16 * MB
WS_WOT = WS_W2T + 448 * 4096
WS_KV = [20 * MB, 20 * MB + 65536]
WS_ST = [21 * MB, 21 * MB + 131072, 21 * MB + 262144]
WS_CSQ = 22 * MB
WS_CS1 = 22 * MB + 8192
WS_SIZE = 268435456
OOB = 0x7ff00000

LOG2E = 0x3fb8aa3b
ONES_BF16 = 0x3f803f80


def f32bits(x):
    import struct
    return struct.unpack("<I", struct.pack("<f", x))[0]


class KB(Kern):
    def prologue(self):
        k = self
        k.S = Alloc("s", 36, 100)
        k.end = "Lend_" + k.name
        k.scmp("s_cmp_ge_u32", s(2), 256)
        k.branch("s_cbranch_scc1", k.end)
        k.smem("s_load_dwordx16", s(16, 16), s(0, 2), 0)
        k.smem("s_load_dwordx2", s(32, 2), s(0, 2), 64)
        k.lane = k.V.get()
        k.l15 = k.V.get()
        k.g = k.V.get()
        k.valu("v_and_b32", k.lane, 63, v(0))
        k.valu("v_and_b32", k.l15, 15, v(0))
        k.valu("v_bfe_u32", k.g, v(0), 4, 2)
        t = k.V.get()
        k.valu("v_lshrrev_b32", t, 6, v(0))
        k.wave = k.S.get()
        k.valu("v_readfirstlane_b32", k.wave, t)
        k.xcd = k.S.get()
        k.slot = k.S.get()
        k.salu("s_and_b32", k.xcd, s(2), 7)
        k.salu("s_lshr_b32", k.slot, s(2), 3)
        k.wait_lg(force=True)

    def srd(self, ptr_sgpr, nbytes):
        d = self.S.get(4, 4)
        self.salu("s_mov_b32", d[0], s(ptr_sgpr))
        self.salu("s_mov_b32", d[1], s(ptr_sgpr + 1))
        self.salu("s_mov_b32", d[2], nbytes)
        self.salu("s_mov_b32", d[3], 0x00020000)
        return d

    def sconst(self, val):
        d = self.S.get()
        self.salu("s_mov_b32", d, hex(val))
        return d

    def finish(self):
        self.place(self.end)
        self.endpgm()

    def rbf2(self, x0, x1, t):
        self.valu("v_cvt_pk_bf16_f32", t, x0, x1)
        self.valu("v_lshlrev_b32", x0, 16, t)
        self.valu("v_and_b32", x1, 0xffff0000, t)

    def rbf1(self, x0, t):
        self.valu("v_cvt_pk_bf16_f32", t, x0, x0)
        self.valu("v_lshlrev_b32", x0, 16, t)

    def stats_finalize(self, S, Q, t):
        k = self
        k.valu("v_mul_f32", S, hex(f32bits(1.0 / 512)), S)
        k.valu("v_mul_f32", Q, hex(f32bits(1.0 / 512)), Q)
        k.valu("v_fma_f32", Q, ("-", S), S, Q)
        k.valu("v_max_f32", Q, 0, Q)
        k.rbf2(S, Q, t)
        k.valu("v_add_f32", Q, hex(f32bits(1e-5)), Q)
        k.rbf1(Q, t)
        k.valu("v_sqrt_f32", Q, Q)
        k.rbf1(Q, t)
        k.valu("v_rcp_f32", Q, Q)
        k.valu("v_sub_f32", S, 0, S)


def swap23(x):
    return (x & ~12) | ((x & 4) << 1) | ((x & 8) >> 1)


def load_stat_partials(k, srd_ws, st_off, s_row0):
    vo = k.V.get()
    k.valu("v_and_b32", vo, 31, k.lane)
    k.valu("v_add_u32", vo, s_row0, vo)
    k.valu("v_lshlrev_b32", vo, 6, vo)
    so = k.sconst(st_off)
    P = k.V.get(16, 4)
    ids = [k.bload(P[4 * i:4 * i + 4], vo, srd_ws, so, 16 * i) for i in range(4)]
    return P, ids[-1]


def reduce_stat_partials(k, P, S, Q):
    k.valu("v_add_f32", S, P[0], P[2])
    k.valu("v_add_f32", Q, P[1], P[3])
    for i in range(2, 8):
        k.valu("v_add_f32", S, S, P[2 * i])
        k.valu("v_add_f32", Q, Q, P[2 * i + 1])


def gen_p1(first):
    k = KB("p1a_kernel" if first else "p1b_kernel")
    LDS_KV, LDS_Q, LDS_RED, LDS_ST, LDS_CS = 0, 65536, 98304, 114688, 115712
    k.lds = 116224
    k.prologue()
    srd_ws = k.srd(32, WS_SIZE)
    srd_w = k.srd(18, 512 * 1536 * 2)
    if first:
        srd_x = k.srd(16, 2048 * 512 * 2)
        srd_dbg = k.srd(30, 256)
        xoff = 0
    else:
        srd_x = srd_ws
        xoff = WS_X2
    kvacc = WS_KV[0 if first else 1]
    rb, hp = k.S.get(), k.S.get()
    t0, t1 = k.S.get(), k.S.get()
    k.salu("s_lshr_b32", t0, k.xcd, 1)
    k.salu("s_lshl_b32", t0, t0, 2)
    k.salu("s_lshr_b32", t1, k.slot, 3)
    k.salu("s_add_u32", rb, t0, t1)
    k.salu("s_and_b32", t0, k.xcd, 1)
    k.salu("s_lshl_b32", t0, t0, 3)
    k.salu("s_and_b32", t1, k.slot, 7)
    k.salu("s_add_u32", hp, t0, t1)
    row0 = k.S.get()
    k.salu("s_lshl_b32", t0, rb, 7)
    k.salu("s_lshl_b32", t1, k.wave, 5)
    k.salu("s_add_u32", row0, t0, t1)
    hp64 = k.S.get()
    k.salu("s_lshl_b32", hp64, hp, 6)

    tv = [k.V.get() for _ in range(4)]

    if first:
        oobz = k.S.get()
        k.scmp("s_cmp_eq_u32", rb, 0)
        k.salu("s_cselect_b32", oobz, 0, hex(OOB))
        zz = k.V.get(2, 2)
        k.valu("v_mov_b32", zz[0], 0)
        k.valu("v_mov_b32", zz[1], 0)
        vz = k.V.get()
        k.valu("v_lshlrev_b32", vz, 3, v(0))
        k.salu("s_lshl_b32", t0, hp, 11)
        k.salu("s_add_u32", t0, t0, hex(kvacc))
        k.salu("s_add_u32", t0, t0, oobz)
        k.bstore(zz, vz, srd_ws, t0, 0, "sc1")
        vz2 = k.V.get()
        k.vcmp("v_cmp_gt_u32", VCC, 16, v(0))
        k.valu("v_mov_b32", tv[0], hex(OOB))
        k.cndmask(vz2, tv[0], vz)
        k.salu("s_lshl_b32", t1, hp, 7)
        k.salu("s_add_u32", t1, t1, hex(kvacc + 32768))
        k.salu("s_add_u32", t1, t1, oobz)
        k.bstore(zz, vz2, srd_ws, t1, 0, "sc1")

    if first:
        u = k.S.get()
        k.salu("s_lshl_b32", u, s(2), 2)
        k.salu("s_add_u32", u, u, k.wave)
        kap, cbp, aa, qq, rbase, hstr, dst = [k.S.get() for _ in range(7)]
        srd_p = k.S.get(4, 4)
        k.salu("s_lshr_b32", kap, u, 3)
        k.salu("s_and_b32", cbp, u, 7)
        k.salu("s_mul_i32", aa, kap, 37)
        k.salu("s_lshr_b32", aa, aa, 8)
        k.salu("s_mul_i32", t0, aa, 7)
        k.salu("s_sub_u32", qq, kap, t0)
        k.salu("s_lshl_b32", rbase, qq, 5)
        k.salu("s_add_u32", t0, rbase, 16)
        k.scmp("s_cmp_ge_u32", qq, 3)
        k.salu("s_cselect_b32", rbase, t0, rbase)
        k.salu("s_mov_b32", hstr, 16 * 1024)
        k.salu("s_mov_b32", srd_p[2], 1792 * 512 * 2)
        k.scmp("s_cmp_eq_u32", qq, 6)
        k.salu("s_cselect_b32", rbase, 96, rbase)
        k.salu("s_cselect_b32", hstr, 112 * 1024, hstr)
        k.salu("s_mul_i32", t0, aa, 224)
        k.salu("s_add_u32", rbase, rbase, t0)
        k.salu("s_sub_u32", t0, kap, 56)
        k.salu("s_lshl_b32", t0, t0, 5)
        k.scmp("s_cmp_ge_u32", u, 448)
        k.salu("s_cselect_b32", rbase, t0, rbase)
        k.salu("s_cselect_b32", hstr, 16 * 1024, hstr)
        k.salu("s_cselect_b32", srd_p[0], s(20), s(26))
        k.salu("s_cselect_b32", srd_p[1], s(21), s(27))
        k.salu("s_cselect_b32", srd_p[2], 512 * 512 * 2, srd_p[2])
        k.salu("s_mov_b32", srd_p[3], 0x00020000)
        k.salu("s_lshl_b32", dst, u, 12)
        k.salu("s_add_u32", dst, dst, hex(WS_W2T))
        k.scmp("s_cmp_ge_u32", u, 576)
        k.salu("s_cselect_b32", dst, hex(OOB), dst)
        k.salu("s_cselect_b32", srd_p[2], 0, srd_p[2])
        k.salu("s_lshl_b32", rbase, rbase, 10)
        k.salu("s_lshl_b32", cbp, cbp, 7)
        k.salu("s_add_u32", rbase, rbase, cbp)
        k.salu("s_add_u32", hstr, hstr, rbase)
        vp = k.V.get()
        k.valu("v_lshlrev_b32", vp, 12, k.g)
        k.valu("v_lshl_add_u32", vp, k.l15, 3, vp)
        PR = k.V.get(16, 4)
        for j in range(8):
            pid = k.bload(PR[2 * j:2 * j + 2], vp, srd_p, rbase if j < 4 else hstr, (j & 3) * 1024)

    voA = [k.V.get(), k.V.get()]
    k.valu("v_add_u32", voA[0], row0, k.l15)
    k.valu("v_lshlrev_b32", voA[0], 10, voA[0])
    k.valu("v_lshl_add_u32", voA[0], k.g, 4, voA[0])
    if xoff:
        k.valu("v_add_u32", voA[0], hex(xoff), voA[0])
    k.valu("v_add_u32", voA[1], 16384, voA[0])
    voKV, voQ = k.V.get(), k.V.get()
    rl, pos, tt = tv[0], tv[1], tv[2]
    k.valu("v_lshrrev_b32", rl, 3, k.lane)
    k.valu("v_and_b32", pos, 7, k.lane)
    k.valu("v_bfe_u32", tt, rl, 1, 2)
    k.valu("v_lshrrev_b32", tv[3], 1, pos)
    k.valu("v_xor_b32", tt, tt, tv[3])
    k.valu("v_and_b32", tv[3], 3, rl)
    k.valu("v_and_b32", rl, 4, rl)
    k.valu("v_lshl_add_u32", rl, rl, 1, tv[3])
    k.valu("v_mul_u32_u24", voKV, 3072, rl)
    k.valu("v_lshrrev_b32", tv[3], 1, tt)
    k.valu("v_lshl_add_u32", voKV, tv[3], 10, voKV)
    k.valu("v_and_b32", tv[3], 1, tt)
    k.valu("v_lshl_add_u32", voKV, tv[3], 5, voKV)
    k.valu("v_and_b32", tv[3], 1, pos)
    k.valu("v_lshl_add_u32", voKV, tv[3], 4, voKV)
    k.valu("v_add_u32", voKV, 1024, voKV)
    k.valu("v_add_u32", voKV, hp64, voKV)
    k.valu("v_lshrrev_b32", rl, 2, k.lane)
    k.valu("v_bfe_u32", tt, rl, 2, 1)
    k.valu("v_bfe_u32", tv[3], k.lane, 1, 1)
    k.valu("v_xor_b32", tt, tt, tv[3])
    k.valu("v_and_b32", pos, 3, rl)
    k.valu("v_bfe_u32", tv[3], rl, 2, 1)
    k.valu("v_lshl_add_u32", pos, tv[3], 3, pos)
    k.valu("v_bfe_u32", tv[3], rl, 3, 1)
    k.valu("v_lshl_add_u32", pos, tv[3], 2, pos)
    k.valu("v_mul_u32_u24", voQ, 3072, pos)
    k.valu("v_lshl_add_u32", voQ, tt, 5, voQ)
    k.valu("v_and_b32", tv[3], 1, k.lane)
    k.valu("v_lshl_add_u32", voQ, tv[3], 4, voQ)
    k.valu("v_add_u32", voQ, hp64, voQ)

    AF = [[k.A.get(4, 4) for ks in range(16)] for rt in range(2)]
    wsoff = k.S.get()
    k.salu("s_mul_i32", wsoff, k.wave, 32 * 3072)
    wm0kv = k.S.get()
    k.salu("s_lshl_b32", wm0kv, k.wave, 12)
    wm0q = k.S.get()
    k.salu("s_lshl_b32", wm0q, k.wave, 11)
    so = k.S.get()
    chunk_id = []
    for c in range(4):
        for ks in range(4 * c, 4 * c + 4):
            for rt in range(2):
                k.bload(AF[rt][ks], voA[rt], srd_x, 0, ks * 64)
        for i in range(4):
            k.salu("s_add_u32", so, wsoff, (4 * c * 32 + (i >> 1) * 16 + (i & 1) * 4) * 3072)
            k.salu("s_add_u32", M0, wm0kv, LDS_KV + 4 * c * 4096 + i * 1024)
            last = k.bload_lds(voKV, srd_w, so)
        chunk_id.append(last)
    for c in range(4):
        for i in range(2):
            k.salu("s_add_u32", so, wsoff, (4 * c * 32 + i * 16) * 3072)
            k.salu("s_add_u32", M0, wm0q, LDS_Q + 4 * c * 2048 + i * 1024)
            q_id = k.bload_lds(voQ, srd_w, so)

    if not first:
        SP, sp_id = load_stat_partials(k, srd_ws, WS_ST[1], row0)
        cskv = [k.V.get() for _ in range(4)]
        csq = [k.V.get(4, 4) for _ in range(2)]
        vcs = k.V.get()
        k.valu("v_lshlrev_b32", vcs, 2, k.l15)
        k.salu("s_lshl_b32", t0, hp, 7)
        k.salu("s_add_u32", t0, t0, hex(WS_CSQ))
        scs = [k.S.get() for _ in range(2)]
        k.salu("s_add_u32", scs[0], t0, 2048)
        k.salu("s_add_u32", scs[1], t0, 4096)
        for t in range(4):
            k.bload(cskv[t], vcs, srd_ws, scs[t >> 1], (t & 1) * 64)
        vcs2 = k.V.get()
        k.valu("v_lshlrev_b32", vcs2, 4, k.g)
        for t in range(2):
            cs_id = k.bload(csq[t], vcs2, srd_ws, t0, t * 64)

    if first:
        sel = [k.sconst(0x05040100), k.sconst(0x07060302)]
        PO = k.V.get(16, 4)
        k.wait_vm(pid)
        for i in range(4):
            for q2 in range(4):
                k.valu("v_perm_b32", PO[4 * i + q2], PR[2 * (2 * q2 + 1) + (i >> 1)], PR[2 * (2 * q2) + (i >> 1)], sel[i & 1])
        vst = k.V.get()
        k.valu("v_and_b32", vst, 3, k.l15)
        k.valu("v_lshlrev_b32", vst, 10, vst)
        k.valu("v_lshl_add_u32", vst, k.g, 8, vst)
        k.valu("v_lshrrev_b32", tv[0], 2, k.l15)
        k.valu("v_lshl_add_u32", vst, tv[0], 6, vst)
        for i in range(4):
            k.bstore(PO[4 * i:4 * i + 4], vst, srd_ws, dst, 16 * i)

    rho, swz = tv[0], tv[1]
    k.valu("v_bfe_u32", rho, k.lane, 2, 2)
    k.valu("v_bfe_u32", tv[2], k.lane, 4, 1)
    k.valu("v_lshl_add_u32", rho, tv[2], 2, rho)
    k.valu("v_bfe_u32", tv[3], k.lane, 5, 1)
    k.valu("v_lshl_add_u32", rho, tv[3], 4, rho)
    k.valu("v_bfe_u32", swz, rho, 1, 2)
    c8 = k.V.get()
    k.valu("v_and_b32", c8, 3, k.lane)
    k.valu("v_lshlrev_b32", c8, 3, c8)
    adKV = [k.V.get() for _ in range(4)]
    for t in range(4):
        k.valu("v_xor_b32", adKV[t], t, swz)
        k.valu("v_lshlrev_b32", adKV[t], 5, adKV[t])
        k.valu("v_lshl_add_u32", adKV[t], rho, 7, adKV[t])
        k.valu("v_add_u32", adKV[t], adKV[t], c8)
    adQ = [k.V.get() for _ in range(2)]
    for t in range(2):
        k.valu("v_xor_b32", adQ[t], t, tv[2])
        k.valu("v_lshlrev_b32", adQ[t], 5, adQ[t])
        k.valu("v_lshl_add_u32", adQ[t], rho, 6, adQ[t])
        k.valu("v_add_u32", adQ[t], adQ[t], c8)
        k.valu("v_add_u32", adQ[t], LDS_Q, adQ[t])
    ones = k.V.get(4, 4)
    for i in range(4):
        k.valu("v_mov_b32", ones[i], hex(ONES_BF16))
    if first:
        adCS = k.V.get()
        k.valu("v_xor_b32", adCS, k.wave, swz)
        k.valu("v_lshlrev_b32", adCS, 5, adCS)
        k.valu("v_lshl_add_u32", adCS, rho, 7, adCS)
        k.valu("v_add_u32", adCS, adCS, c8)

    accKV = [[k.V.get(4, 4) for rt in range(2)] for t in range(4)]
    nb = 5 if first else 4
    BF = [[k.V.get(4, 4) for t in range(nb)] for _ in range(2)]
    if first:
        gram = [k.V.get(4, 4) for _ in range(2)]
        rsum = [k.V.get(4, 4) for _ in range(2)]
        csacc = k.V.get(4, 4)

    def kv_reads(ks):
        b = BF[ks & 1]
        last = None
        for t in range(nb):
            ad = adKV[t] if t < 4 else adCS
            k.dsread(b[t][0:2], ad, ks * 4096, tr=True)
            last = k.dsread(b[t][2:4], ad, ks * 4096 + 1024, tr=True)
        return last

    k.wait_vm(chunk_id[0])
    k.barrier()
    if first:
        vf = k.V.get()
        k.valu("v_mov_b32", tv[0], hex(OOB))
        k.valu("v_mov_b32", tv[1], 0)
        k.vcmp("v_cmp_eq_u32", VCC, 0, v(0))
        k.cndmask(vf, tv[0], tv[1])
        k.valu("v_mov_b32", tv[1], 1)
        fo = k.S.get()
        k.salu("s_lshl_b32", fo, hp, 2)
        k.salu("s_add_u32", t0, fo, oobz)
        k.bstore(tv[1], vf, srd_dbg, t0, 0, "sc1")
    rid = kv_reads(0)
    for ks in range(16):
        if ks + 1 < 16:
            if (ks + 1) % 4 == 0:
                k.wait_vm(chunk_id[(ks + 1) // 4])
                k.barrier()
            nid = kv_reads(ks + 1)
        k.wait_lg(rid)
        b = BF[ks & 1]
        for t in range(4):
            for rt in range(2):
                k.mfma(accKV[t][rt], AF[rt][ks], b[t], accKV[t][rt] if ks else 0)
        if first:
            k.mfma(csacc, ones, b[4], csacc if ks else 0)
            for rt in range(2):
                k.mfma(gram[rt], AF[rt][ks], AF[rt][ks], gram[rt] if ks else 0)
                k.mfma(rsum[rt], ones, AF[rt][ks], rsum[rt] if ks else 0)
        rid = nid

    S_, Q_ = k.V.get(), k.V.get()
    adst = k.V.get()
    wst = k.S.get()
    k.salu("s_lshl_b32", wst, k.wave, 8)
    k.salu("s_add_u32", wst, wst, LDS_ST)
    if first:
        k.valu("v_and_b32", tv[0], 3, k.lane)
        k.valu("v_lshrrev_b32", tv[1], 2, k.l15)
        sv = k.S.get(2, 2)
        for rt in range(2):
            k.valu("v_mov_b32", Q_, gram[rt][0])
            for r in range(1, 4):
                k.vcmp("v_cmp_eq_u32", VCC, r, tv[0])
                k.cndmask(Q_, Q_, gram[rt][r])
            k.valu("v_mov_b32", S_, rsum[rt][0])
            k.stats_finalize(S_, Q_, tv[2])
            k.valu("v_lshlrev_b32", adst, 2, k.l15)
            k.valu("v_add_u32", adst, wst, adst)
            k.vcmp("v_cmp_eq_u32", VCC, tv[1], k.g)
            k.salu("s_and_saveexec_b64", sv, VCC)
            k.dswrite(adst, S_, rt * 64)
            k.dswrite(adst, Q_, 128 + rt * 64)
            k.salu("s_mov_b64", EXEC, sv)
        adc = k.V.get()
        k.valu("v_lshlrev_b32", adc, 2, k.l15)
        k.salu("s_lshl_b32", t0, k.wave, 6)
        k.salu("s_add_u32", t1, t0, LDS_CS)
        k.valu("v_add_u32", adc, t1, adc)
        k.dswrite(adc, csacc[0])
        k.salu("s_lshr_b32", t0, k.wave, 1)
        k.salu("s_lshl_b32", t0, t0, 11)
        k.salu("s_and_b32", t1, k.wave, 1)
        k.salu("s_lshl_b32", t1, t1, 6)
        k.salu("s_add_u32", t0, t0, t1)
        k.salu("s_lshl_b32", t1, hp, 7)
        k.salu("s_add_u32", t0, t0, t1)
        k.salu("s_add_u32", t0, t0, hex(WS_CSQ + 2048))
        k.valu("v_lshlrev_b32", tv[0], 2, k.l15)
        k.bstore(csacc[0], tv[0], srd_ws, t0)
        k.wait_lg()
        k.barrier()
        cskv = [k.V.get() for _ in range(4)]
        k.valu("v_lshlrev_b32", adc, 2, k.l15)
        k.valu("v_add_u32", adc, LDS_CS, adc)
        for t in range(4):
            k.dsread(cskv[t], adc, t * 64)
    else:
        k.wait_vm(sp_id)
        reduce_stat_partials(k, SP, S_, Q_)
        k.stats_finalize(S_, Q_, tv[2])
        k.valu("v_and_b32", adst, 31, k.lane)
        k.valu("v_lshlrev_b32", adst, 2, adst)
        k.valu("v_add_u32", adst, wst, adst)
        k.dswrite(adst, S_)
        k.dswrite(adst, Q_, 128)
        k.wait_vm(cs_id)
    k.wait_lg()
    nm4 = [k.V.get(4, 4) for _ in range(2)]
    rs4 = [k.V.get(4, 4) for _ in range(2)]
    nm1 = [k.V.get() for _ in range(2)]
    rs1 = [k.V.get() for _ in range(2)]
    k.valu("v_lshlrev_b32", adst, 4, k.g)
    k.valu("v_add_u32", adst, wst, adst)
    for rt in range(2):
        k.dsread(nm4[rt], adst, rt * 64)
        k.dsread(rs4[rt], adst, 128 + rt * 64)
    k.valu("v_lshlrev_b32", adst, 2, k.l15)
    k.valu("v_add_u32", adst, wst, adst)
    for rt in range(2):
        k.dsread(nm1[rt], adst, rt * 64)
        k.dsread(rs1[rt], adst, 128 + rt * 64)
    if first:
        vq = k.V.get()
        k.valu("v_mov_b32", vq, 0)
        pollv = k.V.get()
        k.bload(pollv, vq, srd_dbg, fo, 0, "sc1")
    k.wait_lg()

    slog = k.sconst(LOG2E)
    eps6 = hex(f32bits(1e-6))

    def phi_pair(x0, x1, out, tmp):
        e0, e1, tp = tmp
        k.valu("v_min_f32", e0, 0, x0)
        k.valu("v_min_f32", e1, 0, x1)
        k.valu("v_mul_f32", e0, slog, e0)
        k.valu("v_mul_f32", e1, slog, e1)
        k.valu("v_exp_f32", e0, e0)
        k.valu("v_exp_f32", e1, e1)
        k.valu("v_max_f32", x0, 0, x0)
        k.valu("v_max_f32", x1, 0, x1)
        k.valu("v_add_f32", x0, x0, e0)
        k.valu("v_add_f32", x1, x1, e1)
        k.rbf2(x0, x1, tp)
        k.valu("v_add_f32", x0, eps6, x0)
        k.valu("v_add_f32", x1, eps6, x1)
        k.valu("v_cvt_pk_bf16_f32", out, x0, x1)

    FR = [k.V.get(4, 4) for t in range(4)]
    for t in range(4):
        for rt in range(2):
            ac = accKV[t][rt]
            for r in range(4):
                k.valu("v_fma_f32", ac[r], nm4[rt][r], cskv[t], ac[r])
                k.valu("v_mul_f32", ac[r], ac[r], rs4[rt][r])
            for p in range(2):
                out = FR[t][2 * rt + p]
                if t < 2:
                    k.rbf2(ac[2 * p], ac[2 * p + 1], tv[2])
                    phi_pair(ac[2 * p], ac[2 * p + 1], out, tv[0:3])
                else:
                    k.valu("v_cvt_pk_bf16_f32", out, ac[2 * p], ac[2 * p + 1])
    KVD = [k.V.get(4, 4) for _ in range(2)]
    ZD = [k.V.get(4, 4) for _ in range(2)]
    for hh in range(2):
        k.mfma(KVD[hh], FR[2 + hh], FR[hh], 0)
        k.mfma(ZD[hh], ones, FR[hh], 0)
    adr = k.V.get()
    k.valu("v_lshlrev_b32", adr, 4, k.lane)
    k.valu("v_add_u32", adr, wm0kv, adr)
    adz = k.V.get()
    k.valu("v_lshlrev_b32", adz, 2, k.lane)
    k.valu("v_add_u32", adz, wm0kv, adz)
    k.valu("v_add_u32", adr, LDS_RED, adr)
    k.valu("v_add_u32", adz, LDS_RED, adz)
    for hh in range(2):
        k.dswrite(adr, KVD[hh], hh * 1024)
        k.dswrite(adz, ZD[hh][0], 2048 + hh * 256)
    k.wait_vm(q_id)
    k.wait_lg()
    k.barrier()
    k.salu("s_and_b32", t0, k.wave, 1)
    k.salu("s_lshr_b32", t1, k.wave, 1)
    rdo, rdz = k.S.get(), k.S.get()
    k.salu("s_lshl_b32", rdo, t0, 10)
    k.salu("s_lshl_b32", rdz, t1, 3)
    k.salu("s_add_u32", rdo, rdo, rdz)
    k.salu("s_add_u32", rdo, rdo, LDS_RED)
    k.salu("s_lshl_b32", rdz, t0, 8)
    k.salu("s_add_u32", rdz, rdz, LDS_RED + 2048)
    k.valu("v_lshlrev_b32", adr, 4, k.lane)
    k.valu("v_add_u32", adr, rdo, adr)
    k.valu("v_lshlrev_b32", adz, 2, k.lane)
    k.valu("v_add_u32", adz, rdz, adz)
    RD = [k.V.get(2, 2) for _ in range(4)]
    RZ = [k.V.get() for _ in range(4)]
    for src in range(4):
        k.dsread(RD[src], adr, src * 4096)
        k.dsread(RZ[src], adz, src * 4096)
    ao, az = k.S.get(), k.S.get()
    k.salu("s_lshl_b32", ao, hp, 1)
    k.salu("s_add_u32", ao, ao, t0)
    k.salu("s_lshl_b32", az, ao, 6)
    k.salu("s_add_u32", az, az, hex(kvacc + 32768))
    k.salu("s_lshl_b32", ao, ao, 10)
    k.salu("s_lshl_b32", t0, t1, 9)
    k.salu("s_add_u32", ao, ao, t0)
    k.salu("s_add_u32", ao, ao, hex(kvacc))
    k.scmp("s_cmp_eq_u32", t1, 0)
    k.salu("s_cselect_b32", az, az, hex(OOB))
    va, vaz = k.V.get(), k.V.get()
    k.valu("v_lshlrev_b32", va, 2, k.lane)
    k.valu("v_mov_b32", tv[0], hex(OOB))
    k.vcmp("v_cmp_gt_u32", VCC, 16, k.lane)
    k.cndmask(vaz, tv[0], va)
    k.wait_lg()
    for j in range(2):
        k.valu("v_add_f32", RD[0][j], RD[0][j], RD[1][j])
        k.valu("v_add_f32", RD[2][j], RD[2][j], RD[3][j])
        k.valu("v_add_f32", RD[0][j], RD[0][j], RD[2][j])
    k.valu("v_add_f32", RZ[0], RZ[0], RZ[1])
    k.valu("v_add_f32", RZ[2], RZ[2], RZ[3])
    k.valu("v_add_f32", RZ[0], RZ[0], RZ[2])
    if first:
        lp, ld = k.label(), k.label()
        k.salu("s_mov_b32", t1, 0)
        k.wait_vm()
        k.fence(4)
        k.place(lp)
        k.valu("v_readfirstlane_b32", t0, pollv)
        k.nop(3)
        k.scmp("s_cmp_lg_u32", t0, 0)
        k.branch("s_cbranch_scc1", ld)
        k.salu("s_add_u32", t1, t1, 1)
        k.scmp("s_cmp_gt_u32", t1, 200000)
        k.branch("s_cbranch_scc1", ld)
        k.sraw("s_sleep 2")
        k.bload(pollv, vq, srd_dbg, fo, 0, "sc1")
        k.wait_vm()
        k.branch("s_branch", lp)
        k.place(ld)
        k.fence(4)
    k.batomic("buffer_atomic_add_f32", RD[0][0], va, srd_ws, ao, 0)
    k.batomic("buffer_atomic_add_f32", RD[0][1], va, srd_ws, ao, 256)
    k.batomic("buffer_atomic_add_f32", RZ[0], vaz, srd_ws, az, 0)

    accQ = [[accKV[t][rt] for rt in range(2)] for t in range(2)]
    if first:
        csq = [accKV[2][0], accKV[2][1]]

    def q_reads(ks):
        b = BF[ks & 1]
        for t in range(2):
            k.dsread(b[t][0:2], adQ[t], ks * 2048, tr=True)
            last = k.dsread(b[t][2:4], adQ[t], ks * 2048 + 512, tr=True)
        return last

    rid = q_reads(0)
    for ks in range(16):
        if ks + 1 < 16:
            nid = q_reads(ks + 1)
        k.wait_lg(rid)
        b = BF[ks & 1]
        for t in range(2):
            for rt in range(2):
                k.mfma(accQ[t][rt], b[t], AF[rt][ks], accQ[t][rt] if ks else 0)
            if first:
                k.mfma(csq[t], b[t], ones, csq[t] if ks else 0)
        rid = nid
    if first:
        k.valu("v_lshlrev_b32", tv[0], 4, k.g)
        k.valu("v_mov_b32", tv[1], hex(OOB))
        k.vcmp("v_cmp_eq_u32", VCC, 0, k.l15)
        k.cndmask(tv[0], tv[1], tv[0])
        k.salu("s_lshl_b32", t0, hp, 7)
        k.salu("s_add_u32", t0, t0, hex(WS_CSQ))
        for t in range(2):
            k.bstore(csq[t], tv[0], srd_ws, t0, t * 64)
    vpq = k.V.get()
    k.valu("v_lshlrev_b32", vpq, 4, k.lane)
    pqo = k.S.get()
    k.salu("s_lshr_b32", pqo, row0, 4)
    k.salu("s_lshl_b32", pqo, pqo, 4)
    k.salu("s_add_u32", pqo, pqo, hp)
    k.salu("s_lshl_b32", pqo, pqo, 10)
    pqo2 = k.S.get()
    k.salu("s_add_u32", pqo2, pqo, 16384)
    for rt in range(2):
        out = FR[rt]
        for t in range(2):
            ac = accQ[t][rt]
            for r in range(4):
                k.valu("v_fma_f32", ac[r], nm1[rt], csq[t][r], ac[r])
                k.valu("v_mul_f32", ac[r], ac[r], rs1[rt])
            for p in range(2):
                k.rbf2(ac[2 * p], ac[2 * p + 1], tv[2])
                phi_pair(ac[2 * p], ac[2 * p + 1], out[2 * t + p], tv[0:3])
        k.bstore(out, vpq, srd_ws, pqo2 if rt else pqo, WS_PQ)
    k.finish()
    return k


def ksplit_epilogue(k, acc, srd_ws, XR, xr_id, rb2, cb, srd_out, pool, st_off, tv):
    adw = k.V.get()
    t0 = k.S.get()
    k.salu("s_lshl_b32", t0, k.wave, 14)
    k.valu("v_lshlrev_b32", adw, 4, k.lane)
    k.valu("v_add_u32", adw, t0, adw)
    for rt in range(4):
        for i in range(4):
            k.dswrite(adw, acc[rt][i], rt * 4096 + i * 1024)
    k.wait_lg()
    k.barrier()
    adr = k.V.get()
    k.salu("s_lshl_b32", t0, k.wave, 12)
    k.valu("v_lshlrev_b32", adr, 4, k.lane)
    k.valu("v_add_u32", adr, t0, adr)
    RD = [[pool[4 * src + i] for i in range(4)] for src in range(4)]
    for src in range(4):
        for i in range(4):
            k.dsread(RD[src][i], adr, src * 16384 + i * 1024)
    k.wait_lg()
    Y = RD[0]
    for i in range(4):
        for r in range(4):
            k.valu("v_add_f32", RD[0][i][r], RD[0][i][r], RD[1][i][r])
            k.valu("v_add_f32", RD[2][i][r], RD[2][i][r], RD[3][i][r])
            k.valu("v_add_f32", Y[i][r], RD[0][i][r], RD[2][i][r])
    k.wait_vm(xr_id)
    S_, Q_ = k.V.get(), k.V.get()
    OUT = k.V.get(8, 4)
    xa, xb = tv[0], tv[1]
    for i in range(4):
        for p in range(2):
            y0, y1 = Y[i][2 * p], Y[i][2 * p + 1]
            k.rbf2(y0, y1, tv[2])
            k.valu("v_lshlrev_b32", xa, 16, XR[2 * i + p])
            k.valu("v_and_b32", xb, 0xffff0000, XR[2 * i + p])
            k.valu("v_add_f32", y0, y0, xa)
            k.valu("v_add_f32", y1, y1, xb)
            o = OUT[2 * i + p]
            k.valu("v_cvt_pk_bf16_f32", o, y0, y1)
            if st_off is not None:
                k.valu("v_lshlrev_b32", y0, 16, o)
                k.valu("v_and_b32", y1, 0xffff0000, o)
                if i == 0 and p == 0:
                    k.valu("v_add_f32", S_, y0, y1)
                    k.valu("v_mul_f32", Q_, y0, y0)
                else:
                    k.valu("v_add_f32", S_, S_, y0)
                    k.valu("v_add_f32", S_, S_, y1)
                    k.valu("v_fmac_f32", Q_, y0, y0)
                k.valu("v_fmac_f32", Q_, y1, y1)
    return S_, Q_, OUT


def ksplit_store(k, S_, Q_, OUT, vox, srd_out, out_off, srd_ws, st_off, rowv, cb, tv):
    so = k.sconst(out_off) if out_off else 0
    k.bstore(OUT[0:4], vox, srd_out, so, 0)
    k.bstore(OUT[4:8], vox, srd_out, so, 16)
    if st_off is not None:
        SQ = k.V.get(2, 2)
        t = [tv[0], tv[1]]
        k.valu("v_mov_b32", t[0], S_)
        k.valu("v_mov_b32", t[1], Q_)
        k.valu("v_permlane32_swap_b32", t[0], S_)
        k.valu("v_permlane32_swap_b32", t[1], Q_)
        k.valu("v_add_f32", S_, S_, t[0])
        k.valu("v_add_f32", Q_, Q_, t[1])
        k.valu("v_mov_b32", t[0], S_)
        k.valu("v_mov_b32", t[1], Q_)
        k.valu("v_permlane16_swap_b32", t[0], S_)
        k.valu("v_permlane16_swap_b32", t[1], Q_)
        k.valu("v_add_f32", SQ[0], S_, t[0])
        k.valu("v_add_f32", SQ[1], Q_, t[1])
        vs = k.V.get()
        k.valu("v_lshlrev_b32", vs, 6, rowv)
        k.valu("v_mov_b32", t[0], hex(OOB))
        k.vcmp("v_cmp_eq_u32", VCC, 0, k.g)
        k.cndmask(vs, t[0], vs)
        s2_ = k.S.get()
        k.salu("s_lshl_b32", s2_, cb, 3)
        k.salu("s_add_u32", s2_, s2_, hex(st_off))
        k.bstore(SQ, vs, srd_ws, s2_, 0)


def tile64_ids(k):
    rb2, cb = k.S.get(), k.S.get()
    t0 = k.S.get()
    k.salu("s_lshl_b32", rb2, k.xcd, 2)
    k.salu("s_lshr_b32", t0, k.slot, 3)
    k.salu("s_add_u32", rb2, rb2, t0)
    k.salu("s_and_b32", cb, k.slot, 7)
    return rb2, cb


def residual_addr(k, rb2, cb):
    rowv, vox = k.V.get(), k.V.get()
    t0, t1 = k.S.get(), k.S.get()
    k.salu("s_lshl_b32", t0, rb2, 6)
    k.salu("s_lshl_b32", t1, k.wave, 4)
    k.salu("s_add_u32", t0, t0, t1)
    k.valu("v_add_u32", rowv, t0, k.l15)
    k.valu("v_lshlrev_b32", vox, 10, rowv)
    k.valu("v_lshl_add_u32", vox, k.g, 5, vox)
    k.salu("s_lshl_b32", t0, cb, 7)
    k.valu("v_add_u32", vox, t0, vox)
    return rowv, vox


def gen_p2(first):
    k = KB("p2a_kernel" if first else "p2b_kernel")
    k.lds = 65536
    k.prologue()
    srd_ws = k.srd(32, WS_SIZE)
    if first:
        srd_x = k.srd(16, 2048 * 512 * 2)
        xoff = 0
    else:
        srd_x = srd_ws
        xoff = WS_X2
    kvacc = WS_KV[0 if first else 1]
    rb2, cb = tile64_ids(k)
    tv = [k.V.get() for _ in range(4)]
    t0, t1 = k.S.get(), k.S.get()
    v16 = k.V.get()
    k.valu("v_lshlrev_b32", v16, 4, k.lane)
    vkv = k.V.get()
    k.valu("v_and_b32", vkv, 3, k.l15)
    k.valu("v_lshlrev_b32", vkv, 8, vkv)
    k.valu("v_lshrrev_b32", tv[0], 2, k.l15)
    k.valu("v_lshl_add_u32", vkv, tv[0], 6, vkv)
    k.valu("v_lshl_add_u32", vkv, k.g, 4, vkv)
    skv = [k.S.get(), k.S.get()]
    k.salu("s_lshl_b32", skv[0], k.wave, 13)
    k.salu("s_add_u32", skv[0], skv[0], hex(kvacc))
    k.salu("s_add_u32", skv[1], skv[0], 4096)
    KVR = [k.V.get(4, 4) for _ in range(8)]
    for j in range(8):
        k.bload(KVR[j], vkv, srd_ws, skv[j >> 2], (j & 3) * 1024)
    vz = k.V.get()
    k.valu("v_and_b32", vz, 1, k.lane)
    k.valu("v_lshlrev_b32", vz, 6, vz)
    k.valu("v_lshl_add_u32", vz, k.g, 4, vz)
    sz = k.S.get()
    k.salu("s_lshl_b32", sz, k.wave, 9)
    k.salu("s_add_u32", sz, sz, hex(kvacc + 32768))
    ZR = [k.V.get(4, 4) for _ in range(4)]
    for hl in range(4):
        z_id = k.bload(ZR[hl], vz, srd_ws, sz, hl * 128)
    PQF = [[k.V.get(4, 4) for hl in range(4)] for rt in range(4)]
    spq = [k.S.get() for _ in range(4)]
    k.salu("s_lshl_b32", t0, rb2, 16)
    k.salu("s_lshl_b32", t1, k.wave, 12)
    k.salu("s_add_u32", spq[0], t0, t1)
    for rt in range(1, 4):
        k.salu("s_add_u32", spq[rt], spq[0], rt * 16384)
    pq_id = [[None] * 4 for _ in range(4)]
    WF = [[k.A.get(4, 4) for i in range(4)] for hl in range(4)]
    swo = [k.S.get() for _ in range(4)]
    k.salu("s_lshl_b32", t0, k.wave, 17)
    k.salu("s_lshl_b32", t1, cb, 12)
    k.salu("s_add_u32", swo[0], t0, t1)
    k.salu("s_add_u32", swo[0], swo[0], hex(WS_WOT))
    for hl in range(1, 4):
        k.salu("s_add_u32", swo[hl], swo[0], hl * 32768)
    wf_id = [None] * 4
    for hl in range(4):
        for rt in range(4):
            pq_id[rt][hl] = k.bload(PQF[rt][hl], v16, srd_ws, spq[rt], WS_PQ + hl * 1024)
        for i in range(4):
            wf_id[hl] = k.bload(WF[hl][i], v16, srd_ws, swo[hl], i * 1024)
    rowv, vox = residual_addr(k, rb2, cb)
    XR = k.V.get(8, 4)
    sx = k.sconst(xoff) if xoff else 0
    k.bload(XR[0:4], vox, srd_x, sx, 0)
    xr_id = k.bload(XR[4:8], vox, srd_x, sx, 16)
    if first:
        zz = k.V.get(4, 4)
        for i in range(4):
            k.valu("v_mov_b32", zz[i], 0)
        vzz = k.V.get()
        k.valu("v_lshlrev_b32", vzz, 4, v(0))
        k.salu("s_lshl_b32", t0, s(2), 12)
        k.salu("s_add_u32", t0, t0, hex(WS_KV[1]))
        k.scmp("s_cmp_lt_u32", s(2), 9)
        k.salu("s_cselect_b32", t0, t0, hex(OOB))
        k.bstore(zz, vzz, srd_ws, t0, 0)

    k.wait_vm(z_id)
    KVF = [k.V.get(2, 2) for _ in range(8)]
    for j in range(8):
        k.valu("v_cvt_pk_bf16_f32", KVF[j][0], KVR[j][0], KVR[j][1])
        k.valu("v_cvt_pk_bf16_f32", KVF[j][1], KVR[j][2], KVR[j][3])
    ZF = [k.V.get(4, 4) for _ in range(4)]
    k.valu("v_and_b32", tv[0], 1, k.lane)
    k.vcmp("v_cmp_eq_u32", VCC, 1, tv[0])
    for hl in range(4):
        k.valu("v_cvt_pk_bf16_f32", tv[0], ZR[hl][0], ZR[hl][1])
        k.valu("v_cvt_pk_bf16_f32", tv[1], ZR[hl][2], ZR[hl][3])
        k.valu("v_mov_b32", tv[2], 0)
        k.cndmask(ZF[hl][0], tv[0], tv[2])
        k.cndmask(ZF[hl][1], tv[1], tv[2])
        k.cndmask(ZF[hl][2], tv[2], tv[0])
        k.cndmask(ZF[hl][3], tv[2], tv[1])

    acc = [[k.A.get(4, 4) for i in range(4)] for rt in range(4)]
    NUM = [[k.V.get(4, 4) for _ in range(2)] for _ in range(2)]
    DEN = [k.V.get(4, 4) for _ in range(2)]
    OF = [k.V.get(4, 4) for _ in range(2)]
    eps6 = hex(f32bits(1e-6))
    it = 0
    for hl in range(4):
        for rt in range(4):
            b = it & 1
            it += 1
            k.wait_vm(pq_id[rt][hl])
            pf = PQF[rt][hl]
            k.mfma(NUM[b][0], KVF[2 * hl], pf[0:2], 0, "16x16x16")
            k.mfma(NUM[b][1], KVF[2 * hl + 1], pf[2:4], 0, "16x16x16")
            k.mfma(DEN[b], ZF[hl], pf, 0)
            d0, d1 = DEN[b][0], DEN[b][1]
            k.rbf2(d0, d1, tv[2])
            k.valu("v_add_f32", d0, eps6, d0)
            k.valu("v_add_f32", d1, eps6, d1)
            k.rbf2(d0, d1, tv[2])
            k.valu("v_rcp_f32", d0, d0)
            k.valu("v_rcp_f32", d1, d1)
            for hh in range(2):
                n = NUM[b][hh]
                k.rbf2(n[0], n[1], tv[2])
                k.rbf2(n[2], n[3], tv[3])
                for r in range(4):
                    k.valu("v_mul_f32", n[r], n[r], DEN[b][hh])
                k.valu("v_cvt_pk_bf16_f32", OF[b][2 * hh], n[0], n[1])
                k.valu("v_cvt_pk_bf16_f32", OF[b][2 * hh + 1], n[2], n[3])
            k.wait_vm(wf_id[hl])
            for i in range(4):
                k.mfma(acc[rt][i], WF[hl][i], OF[b], acc[rt][i] if hl else 0)
    st_off = WS_ST[0 if first else 2]
    S_, Q_, OUT = ksplit_epilogue(k, acc, srd_ws, XR, xr_id, rb2, cb, srd_ws, [x for row in PQF for x in row], st_off, tv)
    ksplit_store(k, S_, Q_, OUT, vox, srd_ws, WS_X1 if first else WS_X3, srd_ws, st_off, rowv, cb, tv)
    k.finish()
    return k


def gen_p3(first):
    k = KB("p3a_kernel" if first else "p3b_kernel")
    LDS_ST, LDS_CS = 114688, 115712
    k.lds = 116224
    k.prologue()
    srd_ws = k.srd(32, WS_SIZE)
    srd_w = k.srd(24, 512 * 1792 * 2)
    xoff = WS_X1 if first else WS_X3
    st_off = WS_ST[0 if first else 2]
    rb, fb = k.S.get(), k.S.get()
    t0, t1 = k.S.get(), k.S.get()
    k.salu("s_lshr_b32", t0, k.xcd, 1)
    k.salu("s_lshl_b32", t0, t0, 2)
    k.salu("s_lshr_b32", t1, k.slot, 3)
    k.salu("s_add_u32", rb, t0, t1)
    k.salu("s_and_b32", t0, k.xcd, 1)
    k.salu("s_lshl_b32", t0, t0, 3)
    k.salu("s_and_b32", t1, k.slot, 7)
    k.salu("s_add_u32", fb, t0, t1)
    row0 = k.S.get()
    k.salu("s_lshl_b32", t0, rb, 7)
    k.salu("s_lshl_b32", t1, k.wave, 5)
    k.salu("s_add_u32", row0, t0, t1)
    fb224 = k.S.get()
    k.salu("s_mul_i32", fb224, fb, 224)
    tv = [k.V.get() for _ in range(4)]
    voA = [k.V.get(), k.V.get()]
    k.valu("v_add_u32", voA[0], row0, k.l15)
    k.valu("v_lshlrev_b32", voA[0], 10, voA[0])
    k.valu("v_lshl_add_u32", voA[0], k.g, 4, voA[0])
    k.valu("v_add_u32", voA[0], hex(xoff), voA[0])
    k.valu("v_add_u32", voA[1], 16384, voA[0])
    voB = [k.V.get() for _ in range(7)]
    for ii in range(7):
        p, rho, pos = tv[0], tv[1], tv[2]
        k.valu("v_add_u32", p, ii * 64, k.lane)
        k.valu("v_mul_u32_u24", rho, 4682, p)
        k.valu("v_lshrrev_b32", rho, 16, rho)
        k.valu("v_mul_u32_u24", pos, 14, rho)
        k.valu("v_sub_u32", pos, p, pos)
        k.valu("v_and_b32", p, 0x13, rho)
        k.valu("v_bfe_u32", tv[3], rho, 2, 1)
        k.valu("v_lshl_add_u32", p, tv[3], 3, p)
        k.valu("v_bfe_u32", tv[3], rho, 3, 1)
        k.valu("v_lshl_add_u32", p, tv[3], 2, p)
        k.valu("v_mul_u32_u24", voB[ii], 3584, p)
        k.valu("v_lshl_add_u32", voB[ii], pos, 4, voB[ii])
        k.valu("v_add_u32", voB[ii], fb224, voB[ii])
    AF = [[k.A.get(4, 4) for ks in range(16)] for rt in range(2)]
    wsoff = k.S.get()
    k.salu("s_mul_i32", wsoff, k.wave, 32 * 3584)
    wm0 = k.S.get()
    k.salu("s_mul_i32", wm0, k.wave, 7168)
    so = k.S.get()
    chunk_id = []
    for c in range(4):
        for ks in range(4 * c, 4 * c + 4):
            for rt in range(2):
                k.bload(AF[rt][ks], voA[rt], srd_ws, 0, ks * 64)
        k.salu("s_add_u32", so, wsoff, 4 * c * 32 * 3584)
        for ii in range(7):
            k.salu("s_add_u32", M0, wm0, 4 * c * 7168 + ii * 1024)
            last = k.bload_lds(voB[ii], srd_w, so)
        chunk_id.append(last)
    SP, sp_id = load_stat_partials(k, srd_ws, st_off, row0)
    CS = [k.V.get(4, 4) for _ in range(7)]
    vcs = k.V.get()
    k.valu("v_lshlrev_b32", vcs, 4, k.g)
    scs = k.S.get()
    k.salu("s_mul_i32", scs, fb, 448)
    k.salu("s_add_u32", scs, scs, hex(WS_CS1))
    if not first:
        for t in range(7):
            cs_id = k.bload(CS[t], vcs, srd_ws, scs, t * 64)
    rho = tv[0]
    k.valu("v_bfe_u32", rho, k.lane, 2, 2)
    k.valu("v_bfe_u32", tv[2], k.lane, 4, 1)
    k.valu("v_lshl_add_u32", rho, tv[2], 2, rho)
    k.valu("v_bfe_u32", tv[3], k.lane, 5, 1)
    k.valu("v_lshl_add_u32", rho, tv[3], 4, rho)
    adB = [k.V.get(), k.V.get()]
    k.valu("v_mul_u32_u24", adB[0], 224, rho)
    k.valu("v_and_b32", tv[1], 3, k.lane)
    k.valu("v_lshl_add_u32", adB[0], tv[1], 3, adB[0])
    k.valu("v_add_u32", adB[1], 8 * 7168, adB[0])
    if first:
        ones = k.V.get(4, 4)
        for i in range(4):
            k.valu("v_mov_b32", ones[i], hex(ONES_BF16))
        adC = [[k.V.get(), k.V.get()] for _ in range(2)]
        k.salu("s_lshl_b32", t0, k.wave, 5)
        k.salu("s_add_u32", t1, t0, 128)
        k.scmp("s_cmp_eq_u32", k.wave, 3)
        k.salu("s_cselect_b32", t1, t0, t1)
        for hh in range(2):
            k.valu("v_add_u32", adC[0][hh], t0, adB[hh])
            k.valu("v_add_u32", adC[1][hh], t1, adB[hh])
        csacc = [k.V.get(4, 4) for _ in range(2)]
    acc = [[k.V.get(4, 4) for rt in range(2)] for t in range(7)]
    nb = 9 if first else 7
    BF = [[k.V.get(4, 4) for t in range(nb)] for _ in range(2)]

    def reads(ks):
        b = BF[ks & 1]
        hh = ks >> 3
        o = (ks & 7) * 7168
        for t in range(nb):
            if t < 7:
                ad, oo = adB[hh], o + t * 32
            else:
                ad, oo = adC[t - 7][hh], o
            k.dsread(b[t][0:2], ad, oo, tr=True)
            last = k.dsread(b[t][2:4], ad, oo + 8 * 224, tr=True)
        return last

    k.wait_vm(chunk_id[0])
    k.barrier()
    rid = reads(0)
    for ks in range(16):
        if ks + 1 < 16:
            if (ks + 1) % 4 == 0:
                k.wait_vm(chunk_id[(ks + 1) // 4])
                k.barrier()
            nid = reads(ks + 1)
        k.wait_lg(rid)
        b = BF[ks & 1]
        for t in range(7):
            for rt in range(2):
                k.mfma(acc[t][rt], b[t], AF[rt][ks], acc[t][rt] if ks else 0)
        if first:
            for j in range(2):
                k.mfma(csacc[j], b[7 + j], ones, csacc[j] if ks else 0)
        rid = nid

    S_, Q_ = k.V.get(), k.V.get()
    adst = k.V.get()
    wst = k.S.get()
    k.salu("s_lshl_b32", wst, k.wave, 8)
    k.salu("s_add_u32", wst, wst, LDS_ST)
    k.wait_vm(sp_id)
    reduce_stat_partials(k, SP, S_, Q_)
    k.stats_finalize(S_, Q_, tv[2])
    k.valu("v_and_b32", adst, 31, k.lane)
    k.valu("v_lshlrev_b32", adst, 2, adst)
    k.valu("v_add_u32", adst, wst, adst)
    k.dswrite(adst, S_)
    k.dswrite(adst, Q_, 128)
    if first:
        adc = k.V.get()
        k.valu("v_lshlrev_b32", adc, 4, k.g)
        k.salu("s_lshl_b32", t0, k.wave, 6)
        k.salu("s_add_u32", t1, t0, 256)
        k.scmp("s_cmp_eq_u32", k.wave, 3)
        k.salu("s_cselect_b32", t1, t0, t1)
        k.valu("v_add_u32", tv[0], t0, adc)
        k.valu("v_add_u32", tv[1], t1, adc)
        k.valu("v_add_u32", tv[2], LDS_CS, tv[0])
        k.valu("v_add_u32", tv[3], LDS_CS, tv[1])
        k.dswrite(tv[2], csacc[0])
        k.dswrite(tv[3], csacc[1])
        k.bstore(csacc[0], tv[0], srd_ws, scs)
        k.bstore(csacc[1], tv[1], srd_ws, scs)
        k.wait_lg()
        k.barrier()
        k.valu("v_add_u32", adc, LDS_CS, adc)
        for t in range(7):
            k.dsread(CS[t], adc, t * 64)
    else:
        k.wait_vm(cs_id)
    k.wait_lg()
    nm1 = [k.V.get() for _ in range(2)]
    rs1 = [k.V.get() for _ in range(2)]
    k.valu("v_lshlrev_b32", adst, 2, k.l15)
    k.valu("v_add_u32", adst, wst, adst)
    for rt in range(2):
        k.dsread(nm1[rt], adst, rt * 64)
        k.dsread(rs1[rt], adst, 128 + rt * 64)
    k.wait_lg()
    snl = k.sconst(LOG2E | 0x80000000)
    HO = [k.V.get(4, 4) for _ in range(2)]
    vh = k.V.get()
    k.valu("v_lshlrev_b32", vh, 4, k.lane)
    hb, hl_ = k.S.get(), k.S.get()
    k.salu("s_lshr_b32", t0, row0, 4)
    k.salu("s_mul_i32", hb, t0, 56)
    k.salu("s_lshr_b32", t0, fb, 1)
    k.salu("s_mul_i32", t0, t0, 7)
    k.salu("s_add_u32", hb, hb, t0)
    k.salu("s_and_b32", t1, fb, 1)
    k.salu("s_add_u32", hl_, hb, 6)
    k.salu("s_lshl_b32", hl_, hl_, 10)
    k.salu("s_lshl_b32", t0, t1, 3)
    k.salu("s_add_u32", hl_, hl_, t0)
    k.salu("s_add_u32", hl_, hl_, hex(WS_H))
    k.salu("s_mul_i32", t0, t1, 3)
    k.salu("s_add_u32", hb, hb, t0)
    k.salu("s_lshl_b32", hb, hb, 10)
    k.salu("s_add_u32", hb, hb, hex(WS_H))
    hb2, hl2 = k.S.get(), k.S.get()
    k.salu("s_add_u32", hb2, hb, 56 * 1024)
    k.salu("s_add_u32", hl2, hl_, 56 * 1024)
    n = 0
    for rt in range(2):
        for t in range(7):
            ho = HO[n & 1]
            ac = acc[t][rt]
            for r in range(4):
                k.valu("v_fma_f32", ac[r], nm1[rt], CS[t][r], ac[r])
                k.valu("v_mul_f32", ac[r], ac[r], rs1[rt])
            for p in range(2):
                x0, x1 = ac[2 * p], ac[2 * p + 1]
                k.rbf2(x0, x1, tv[2])
                e0, e1 = tv[0], tv[1]
                k.valu("v_mul_f32", e0, snl, x0)
                k.valu("v_mul_f32", e1, snl, x1)
                k.valu("v_exp_f32", e0, e0)
                k.valu("v_exp_f32", e1, e1)
                k.valu("v_add_f32", e0, 1.0, e0)
                k.valu("v_add_f32", e1, 1.0, e1)
                k.valu("v_rcp_f32", e0, e0)
                k.valu("v_rcp_f32", e1, e1)
                k.valu("v_mul_f32", x0, x0, e0)
                k.valu("v_mul_f32", x1, x1, e1)
                k.valu("v_cvt_pk_bf16_f32", ho[(2 * (t & 1) if t < 6 else 0) + p], x0, x1)
            if t < 6 and (t & 1):
                k.bstore(ho, vh, srd_ws, hb2 if rt else hb, (t >> 1) * 1024)
                n += 1
            if t == 6:
                k.bstore(ho[0:2], vh, srd_ws, hl2 if rt else hl_, 0)
                n += 1
    k.finish()
    return k


def gen_p4(first):
    k = KB("p4a_kernel" if first else "p4b_kernel")
    k.lds = 65536
    k.prologue()
    srd_ws = k.srd(32, WS_SIZE)
    if first:
        srd_out = srd_ws
    else:
        srd_out = k.srd(28, 2048 * 512 * 2)
    rb2, cb = tile64_ids(k)
    tv = [k.V.get() for _ in range(4)]
    t0, t1 = k.S.get(), k.S.get()
    v16 = k.V.get()
    k.valu("v_lshlrev_b32", v16, 4, k.lane)
    rowv, vox = residual_addr(k, rb2, cb)
    XR = k.V.get(8, 4)
    sx = k.sconst(WS_X1 if first else WS_X3)
    k.bload(XR[0:4], vox, srd_ws, sx, 0)
    xr_id = k.bload(XR[4:8], vox, srd_ws, sx, 16)
    sh = [k.S.get() for _ in range(4)]
    k.salu("s_mul_i32", t0, rb2, 4 * 56 * 1024)
    k.salu("s_mul_i32", t1, k.wave, 14 * 1024)
    k.salu("s_add_u32", sh[0], t0, t1)
    k.salu("s_add_u32", sh[0], sh[0], hex(WS_H))
    for rt in range(1, 4):
        k.salu("s_add_u32", sh[rt], sh[0], rt * 56 * 1024)
    sw = k.S.get()
    k.salu("s_mul_i32", t0, k.wave, 14 * 8 * 4096)
    k.salu("s_lshl_b32", t1, cb, 12)
    k.salu("s_add_u32", sw, t0, t1)
    k.salu("s_add_u32", sw, sw, hex(WS_W2T))
    acc = [[k.A.get(4, 4) for i in range(4)] for rt in range(4)]
    NS = 7
    HF = [[k.A.get(4, 4) for rt in range(4)] for _ in range(NS)]
    WF = [[k.V.get(4, 4) for i in range(4)] for _ in range(NS)]
    vh = [v16] + [k.V.get() for _ in range(3)]
    for q in range(1, 4):
        k.valu("v_add_u32", vh[q], q * 4096, v16)
    swj = k.S.get()
    ids = {}

    def issue(j):
        sl = j % NS
        for rt in range(4):
            k.bload(HF[sl][rt], vh[j >> 2], srd_ws, sh[rt], (j & 3) * 1024)
        k.salu("s_add_u32", swj, sw, j * 32768)
        for i in range(4):
            ids[j] = k.bload(WF[sl][i], v16, srd_ws, swj, i * 1024)

    for j in range(NS):
        issue(j)
    for j in range(14):
        k.wait_vm(ids[j])
        sl = j % NS
        for rt in range(4):
            for i in range(4):
                k.mfma(acc[rt][i], WF[sl][i], HF[sl][rt], acc[rt][i] if j else 0)
        if j + NS < 14:
            issue(j + NS)
    st_off = WS_ST[1] if first else None
    S_, Q_, OUT = ksplit_epilogue(k, acc, srd_ws, XR, xr_id, rb2, cb, srd_out, [x for row in WF for x in row], st_off, tv)
    ksplit_store(k, S_, Q_, OUT, vox, srd_out, WS_X2 if first else 0, srd_ws, st_off, rowv, cb, tv)
    k.finish()
    return k


def main(out):
    ks = [gen_p1(True), gen_p2(True), gen_p3(True), gen_p4(True),
          gen_p1(False), gen_p2(False), gen_p3(False), gen_p4(False)]
    hdr = open("interleave_layers__linear_attn_block__dense_activation_silu__prompt.s.ref").read().splitlines()
    lines = [l for l in hdr if l.startswith(";") and "@launch" not in l and "Override" not in l and "grid=ceil" not in l]
    for k in ks:
        lines.append(f"; @launch kernel={k.name} grid=(256,1,1) block=(256,1,1) lds={k.lds}")
    lines.append('.amdgcn_target "amdgcn-amd-amdhsa--gfx950"')
    lines.append(".text")
    txt = "\n".join(lines) + "\n"
    for k in ks:
        txt += k.text()
    txt += '.section .rodata,"a"\n'
    for k in ks:
        txt += ".p2align 6\n" + k.descriptor()
    open(out, "w").write(txt)
    for k in ks:
        print(k.name, "vgpr", k.V.high, "agpr", k.A.high, "sgpr", k.S.high, k.stats)


if __name__ == "__main__":
    main(sys.argv[1] if len(sys.argv) > 1 else "interleave_layers__linear_attn_block__dense_activation_silu__prompt.s")
```
